```python
import torch

def _softmax(x, axis=-1):
    return torch.softmax(x, dim=axis)
def _gelu(x):
    return torch.nn.functional.gelu(x, approximate="tanh")
def _silu(x):
    return torch.nn.functional.silu(x)
def _sigmoid(x):
    return torch.sigmoid(x)
def _layernorm(x, axis=-1, eps=1e-5):
    m = x.mean(dim=axis, keepdim=True)
    v = x.var(dim=axis, keepdim=True, unbiased=False)
    return (x - m) / torch.sqrt(v + eps)
def _scatter_add(tgt, idx, src, axis=0):
    return tgt.clone().index_add_(axis, idx, src)
def _segment_sum(src, seg, n):
    out = torch.zeros((n,) + src.shape[1:], dtype=src.dtype)
    return out.index_add_(0, seg, src)
def _pad(x, pw):
    flat = tuple(v for pair in reversed(pw) for v in pair)
    return torch.nn.functional.pad(x, flat)

kernel_name = 'gather_scatter__edge_featured_mpnn_egc__graph'

def setup_inputs():

    _w = (lambda a: (lambda t: t.to(torch.bfloat16) if t.is_floating_point() else t)(torch.as_tensor(a)))
    N, deg, D, De = 10000, 16, 256, max(16, 1)
    E = N * deg
    return {
        "x": _w((lambda *s: torch.randn(*s, dtype=torch.bfloat16) * 0.1)(N, D)),
        "e_attr": _w((lambda *s: torch.randn(*s, dtype=torch.bfloat16) * 0.1)(E, De)),
        "src": _w((lambda lo, hi, *s: torch.randint(lo, hi, s))(0, N, E).to(torch.int64)),
        "dst": _w((lambda lo, hi, *s: torch.randint(lo, hi, s))(0, N, E).to(torch.int64)),
        "u_w": _w((lambda *s: torch.randn(*s, dtype=torch.bfloat16) * 0.05)(D, D)),
        "v_w": _w((lambda *s: torch.randn(*s, dtype=torch.bfloat16) * 0.05)(D, D)),
        "g_w": _w((lambda *s: torch.randn(*s, dtype=torch.bfloat16) * 0.1)(2 * D + De, D)),
    }

def reference(x, e_attr, src, dst, u_w, v_w, g_w):
    N, D = x.shape
    g_in = torch.concatenate([x[dst], x[src], e_attr], axis=-1)
    eta = _sigmoid(g_in @ g_w)
    hv = x @ v_w
    msg = eta * hv[src]
    agg = _segment_sum(msg, dst, N)
    return _silu(x @ u_w + agg)
```

```python
import re

class Asm:
    def __init__(self):
        self.lines = []
    def __call__(self, s):
        for l in s.split("\n"):
            l = l.strip()
            if l:
                self.lines.append(l)
    def ext(self, lst):
        for l in lst:
            self(l)
    def label(self, n):
        self.lines.append(n + ":")
    def text(self):
        out = []
        for l in self.lines:
            if l.endswith(":") or l.startswith("."):
                out.append(l)
            else:
                out.append("  " + l)
        return "\n".join(out) + "\n"

def vr(a, n=1):
    return f"v{a}" if n == 1 else f"v[{a}:{a+n-1}]"
def sr(a, n=1):
    return f"s{a}" if n == 1 else f"s[{a}:{a+n-1}]"

def merge(main, extra, start=0, end=None):
    n = len(main) if end is None else end
    m = len(extra)
    pos = [start + (i * (n - start)) // m for i in range(m)] if m else []
    out = []; j = 0
    for i, x in enumerate(main):
        while j < m and pos[j] == i:
            out.append(extra[j]); j += 1
        out.append(x)
    out += extra[j:]
    return out

_reg = re.compile(r'^(-|\|)?(abs\()?([vsa])(\d+|\[(\d+):(\d+)\])\)?\|?$')
TRANS = ('v_exp_f32','v_rcp_f32','v_log_f32','v_rsq_f32','v_sqrt_f32','v_sin_f32','v_cos_f32','v_exp_f16','v_rcp_f16')

def regs_of(op):
    op = op.strip()
    if op in ('vcc',): return {('s','vcc')}
    if op in ('vcc_lo','vcc_hi'): return {('s','vcc')}
    if op == 'exec': return {('s','exec')}
    if op == 'm0': return {('s','m0')}
    m = _reg.match(op)
    if not m: return set()
    k = m.group(3)
    if m.group(5) is not None:
        return {(k, i) for i in range(int(m.group(5)), int(m.group(6)) + 1)}
    return {(k, int(m.group(4)))}

class Ins:
    def __init__(self, text):
        self.text = text
        t = text.split(';')[0].strip()
        parts = t.split(None, 1)
        self.mn = parts[0]
        rest = parts[1] if len(parts) > 1 else ''
        ops = []; cur = ''; d = 0
        for ch in rest:
            if ch == '[': d += 1
            if ch == ']': d -= 1
            if ch == ',' and d == 0:
                ops.append(cur.strip()); cur = ''
            else: cur += ch
        if cur.strip(): ops.append(cur.strip())
        self.mods = ''
        if ops:
            lp = ops[-1].split()
            ops[-1] = lp[0]; self.mods = ' '.join(lp[1:])
        self.ops = ops
        mn = self.mn
        self.is_mfma = mn.startswith('v_mfma')
        self.is_valu = mn.startswith('v_') and not self.is_mfma
        self.is_trans = mn.replace('_e32','').replace('_e64','') in TRANS
        self.is_vmem = mn.startswith(('buffer_','global_','flat_'))
        self.is_ds = mn.startswith('ds_')
        self.is_salu = mn.startswith('s_')
        self.w = set(); self.r = set()
        self.srcc = set(); self.srcab = set(); self.storedata = set()
        R = regs_of
        if self.is_mfma:
            self.w = R(ops[0]); self.srcab = R(ops[1]) | R(ops[2]); self.srcc = R(ops[3]); self.r = self.srcab | self.srcc
            self.passes = 8 if '32x32x16' in mn else 4 if '16x16x32' in mn else 16
        elif self.is_valu:
            if mn.startswith('v_cmp'):
                self.w = R(ops[0]);
                for o in ops[1:]: self.r |= R(o)
                if mn.startswith('v_cmpx'): self.w |= {('s','exec')}
            elif mn.startswith(('v_add_co','v_sub_co','v_addc_co','v_subb_co','v_subrev_co','v_mad_u64_u32')):
                self.w = R(ops[0]) | R(ops[1])
                for o in ops[2:]: self.r |= R(o)
            elif mn.startswith('v_permlane') or mn.startswith('v_swap'):
                self.w = R(ops[0]) | R(ops[1]); self.r = set(self.w)
            elif mn == 'v_nop':
                pass
            else:
                self.w = R(ops[0])
                for o in ops[1:]: self.r |= R(o)
                if mn.startswith(('v_fmac','v_pk_fmac','v_dot2c','v_writelane')) or 'UNUSED_PRESERVE' in text or 'dpp' in mn: self.r |= R(ops[0])
        elif self.is_vmem:
            lds = ' lds' in (' ' + self.mods)
            if 'load' in mn:
                if lds or 'load_lds' in mn:
                    for o in ops: self.r |= R(o)
                    self.r |= {('s','m0')}
                else:
                    self.w = R(ops[0])
                    for o in ops[1:]: self.r |= R(o)
                    if 'd16' in mn: self.r |= R(ops[0])
            elif 'store' in mn:
                for o in ops: self.r |= R(o)
                self.storedata = R(ops[0]) if mn.startswith('buffer') else R(ops[1])
            elif 'atomic' in mn:
                if mn.startswith('buffer'):
                    for o in ops: self.r |= R(o)
                    if 'sc0' in self.mods: self.w = R(ops[0])
                else:
                    if 'sc0' in self.mods:
                        self.w = R(ops[0])
                        for o in ops[1:]: self.r |= R(o)
                    else:
                        for o in ops: self.r |= R(o)
        elif self.is_ds:
            if mn.startswith(('ds_read','ds_bpermute','ds_permute','ds_swizzle')) or '_rtn' in mn:
                self.w = R(ops[0])
                for o in ops[1:]: self.r |= R(o)
            else:
                for o in ops: self.r |= R(o)
        elif self.is_salu:
            if mn.startswith(('s_cmp','s_cbranch','s_branch','s_waitcnt','s_nop','s_barrier','s_endpgm','s_setprio','s_sleep','s_bitcmp')):
                for o in ops: self.r |= R(o)
            else:
                if ops: self.w = R(ops[0])
                for o in ops[1:]: self.r |= R(o)
                if 'saveexec' in mn: self.w |= {('s','exec')}
        self.states = 1
        if mn == 's_nop': self.states = int(ops[0], 0) + 1

def need(p, c):
    n = 0
    V = lambda s: {x for x in s if x[0] in 'va'}
    S = lambda s: {x for x in s if x[0] == 's'}
    if p.is_valu:
        if c.is_mfma and (V(p.w) & c.r): n = max(n, 2)
        if c.is_mfma and ('s','exec') in p.w: n = max(n, 4)
        if c.is_vmem and (S(p.w) & c.r): n = max(n, 5)
        if c.is_valu:
            sw = S(p.w)
            rd = set(c.r)
            if c.mn.startswith(('v_cndmask','v_addc','v_subb')) and len(c.ops) < 4: rd |= {('s','vcc')}
            if sw & rd:
                n = max(n, 4 if c.mn.startswith(('v_readlane','v_writelane')) else 2)
            if c.mn.startswith(('v_readlane','v_readfirstlane')) and (V(p.w) & c.r): n = max(n, 1)
            if ('dpp' in c.mn or 'row_' in c.mods or 'quad_perm' in c.mods) and (V(p.w) & c.r): n = max(n, 2)
            if ('dpp' in c.mn) and ('s','exec') in p.w: n = max(n, 5)
            if c.mn.startswith('v_permlane') and (V(p.w) & c.r): n = max(n, 2)
            if p.is_trans and not c.is_trans and (V(p.w) & c.r): n = max(n, 1)
            if ('sdwa' in p.mn or 'op_sel' in p.mods) and (V(p.w) & (c.r | c.w)): n = max(n, 1)
            if ('s','exec') in p.w and c.mn.startswith(('v_readlane','v_readfirstlane','v_writelane','v_permlane')): n = max(n, 4)
    if p.is_salu:
        if ('s','m0') in p.w and ('s','m0') in c.r and (c.is_vmem or c.is_ds): n = max(n, 1)
    if p.is_vmem and p.storedata and ('x3' in p.mn or 'x4' in p.mn):
        if p.storedata & c.w: n = max(n, 2 if c.is_valu else 1)
    if p.is_mfma:
        big = {2:5,4:8,8:12,16:20}[p.passes]
        if c.is_mfma:
            if p.w & c.srcab: n = max(n, big)
            if p.w & c.srcc:
                if c.srcc == p.w and c.passes == p.passes: n = max(n, 0 if p.passes > 2 else 2)
                else: n = max(n, {2:4,4:6,8:10,16:18}[p.passes])
        elif c.is_valu or c.is_vmem or c.is_ds:
            if p.w & (c.r | c.w): n = max(n, big)
            if c.is_valu and (p.srcc & c.w): n = max(n, {2:1,4:3,8:7,16:15}[p.passes])
    return n

def check_hazards(lines, verbose=True):
    ins = []; labels = {}
    for l in lines:
        l0 = l.split(';')[0].strip()
        if not l0 or l0.startswith('.'): continue
        if l0.endswith(':'):
            labels[l0[:-1]] = len(ins); continue
        ins.append(Ins(l0))
    preds = [[] for _ in ins]
    for i, x in enumerate(ins):
        fall = x.mn not in ('s_branch', 's_endpgm')
        if fall and i + 1 < len(ins): preds[i+1].append(i)
        if x.mn.startswith(('s_branch','s_cbranch')):
            t = labels[x.ops[0]]
            if t < len(ins): preds[t].append(i)
    bad = []
    for i, c in enumerate(ins):
        seen = {}
        stack = [(p, 0) for p in preds[i]]
        while stack:
            j, dist = stack.pop()
            if dist >= 20: continue
            if j in seen and seen[j] <= dist: continue
            seen[j] = dist
            n = need(ins[j], c)
            if n > dist:
                bad.append((j, i, n, dist))
            for p in preds[j]:
                stack.append((p, dist + ins[j].states))
    if verbose:
        for j, i, n, d in bad:
            print(f"HAZARD need {n} have {d}: [{j}] {ins[j].text}  ->  [{i}] {ins[i].text}")
    return bad
```

```python
import sys
from asmlib import *
import k1, k2
NAME="gather_scatter__edge_featured_mpnn_egc__graph"
def kd(name, vg, sg):
    return f""".p2align 6
.amdhsa_kernel {name}
  .amdhsa_next_free_vgpr {vg}
  .amdhsa_next_free_sgpr {sg}
  .amdhsa_accum_offset {(vg+3)//4*4}
  .amdhsa_group_segment_fixed_size 0
  .amdhsa_kernarg_size 80
  .amdhsa_user_sgpr_count 2
  .amdhsa_user_sgpr_kernarg_segment_ptr 1
  .amdhsa_system_sgpr_workgroup_id_x 1
.end_amdhsa_kernel
"""
def build(kernels, path):
    s = "; EGC message passing: k1 = node GEMMs + edge bucketing, k2 = gated gather / segment-sum\n"
    for n,a,g,b,l,vg,sg in kernels:
        s += f"; @launch kernel={n} grid=({g},1,1) block=({b},1,1) lds={l}\n"
    s += '.amdgcn_target "amdgcn-amd-amdhsa--gfx950"\n.text\n'
    ok=True
    for n,a,g,b,l,vg,sg in kernels:
        if check_hazards(a.lines): ok=False
        s += f".globl {n}\n.p2align 8\n.type {n},@function\n{n}:\n" + a.text()
    s += 'CODE_END:\n.section .rodata,"a"\n'
    for n,a,g,b,l,vg,sg in kernels: s += kd(n,vg,sg)
    open(path,"w").write(s)
    if not ok: print("HAZARDS in", path)
    return ok
def make(path, k1kw={}, k2kw={}):
    ks=[("k1_kernel", k1.gen_k1(**k1kw), 256, 512, k1.K1_LDS, 256, 96),
        ("k2_kernel", k2.gen_k2(**k2kw), 256, 512, k2.K2_LDS, 256, 102)]
    return build(ks, path)
if __name__=="__main__":
    make("v_B.s")
    make("v_Bs.s", dict(stamps=True), dict(stamps=True))
```

```python
from asmlib import *
N=10000; E=160000
WS_CF=0; WS_CNT=0x2000; WS_REC=0x10000; WS_T=0x400000; TS=N*256; WS_U=WS_T+4*TS; WS_EA=0x1800000
NSUB=8; CAP=128; OVF0=512*NSUB*CAP; OVFCAP=20480; NSLOT=OVF0+NSUB*OVFCAP
NLOG2E=0xbfb8aa3b
BIG=0x7f000000
RT=313
L_W=0; L_X=65536; L_HIST=L_X+5*16384+13312; L_SYNC=L_HIST+2048
K1_LDS=L_SYNC+64
WS_STAMP=0x3c00000

def srd(a, d, lo, hi, size, off=0, w3=0x20000):
    if off == 0:
        a(f"s_mov_b32 s{d}, s{lo}"); a(f"s_mov_b32 s{d+1}, s{hi}")
    else:
        a(f"s_add_u32 s{d}, s{lo}, {off}"); a(f"s_addc_u32 s{d+1}, s{hi}, 0")
    a(f"s_mov_b32 s{d+2}, {size}")
    a(f"s_mov_b32 s{d+3}, {hex(w3)}")

def gen_k1(fmt='B', st_mod=' sc1', sc_mod='', stamps=False, clk='s_memrealtime', nt=' nt', spf=1, wtouch=1, touch=1, wb=1,
           nostore=False, noscat=False, probe_early=1, gol=5):
    a = Asm()
    def stamp(i):
        if not stamps: return
        a(f"{clk} s[80:81]"); a("s_waitcnt lgkmcnt(0)"); a(f"s_mov_b32 s{82+i}, s80")
    def dump():
        if not stamps: return
        a("s_waitcnt vmcnt(0)")
        stamp(11)
        a("s_lshl_b32 s81, s2, 3"); a("s_add_u32 s80, s4, s81"); a("s_lshl_b32 s80, s80, 6"); a(f"s_add_u32 s80, s80, {WS_STAMP}")
        for i in range(12): a(f"v_mov_b32 v{8+i}, s{82+i}")
        a("v_mov_b32 v1, s80")
        for i in range(3): a(f"global_store_dwordx4 v1, v[{8+4*i}:{11+4*i}], s[34:35] offset:{16*i}")
    sWAVE=4; sROW0=5; sTYPE=6; sSL=7; sT=8; sT2=9; sBIG=10; sMASK=11; sRB=12; sRB2=13; sCH=14; sSUB=15
    sX=36; sP=40; sQ=44; sO=48; sD=52; sS=56; sEAI=60; sREC=64; sEAO=68
    vSY=63
    lab=[0]
    def signal(word_off_sgpr_or_imm, stage, vt=62, va=61):
        a(f"v_mov_b32 v{vt}, {stage}")
        a(f"ds_write_b32 v{va}, v{vt}")
    def wait(kind, stage, vt=56):
        lab[0]+=1; L=f"K1_W{lab[0]}"
        a.label(L)
        if kind=='G':
            a(f"ds_read_b128 v[{vt}:{vt+3}], v{vSY} offset:16"); a("s_waitcnt lgkmcnt(0)")
            a(f"v_min_u32 v{vt}, v{vt}, v{vt+1}"); a(f"v_min3_u32 v{vt}, v{vt}, v{vt+2}, v{vt+3}")
        else:
            a(f"ds_read_b64 v[{vt}:{vt+1}], v{vSY} offset:{0 if kind=='L' else 8}"); a("s_waitcnt lgkmcnt(0)")
            a(f"v_min_u32 v{vt}, v{vt}, v{vt+1}")
        a("s_nop 0")
        a(f"v_readfirstlane_b32 s{sT2}, v{vt}")
        a(f"s_cmp_lt_u32 s{sT2}, {stage}")
        a(f"s_cbranch_scc1 {L}")

    a("s_cmp_ge_u32 s2, 256"); a("s_cbranch_scc1 K1_END")
    stamp(0)
    a("s_load_dwordx16 s[16:31], s[0:1], 0")
    a("s_load_dwordx4 s[32:35], s[0:1], 64")
    a("s_getpc_b64 s[8:9]")
    a.label("K1_PC")
    a("v_lshlrev_b32 v60, 7, v0")
    a("v_cmp_gt_u32 vcc, CODE_END-K1_PC, v60")
    a("s_and_saveexec_b64 s[10:11], vcc")
    a("s_cbranch_execz K1_NOPF")
    a("global_load_dword v60, v60, s[8:9]")
    a.label("K1_NOPF")
    a("s_mov_b64 exec, s[10:11]")
    a("v_lshrrev_b32 v1, 6, v0")
    a("v_and_b32 v2, 63, v0")
    a(f"v_readfirstlane_b32 s{sWAVE}, v1")
    a("v_mov_b32 v40, 0"); a("v_lshlrev_b32 v42, 2, v0"); a(f"v_add_u32 v42, {L_HIST}, v42")
    a("ds_write_b32 v42, v40")
    a(f"v_mov_b32 v{vSY}, {L_SYNC}")
    a(f"s_and_b32 s{sSUB}, s2, 7")
    a(f"s_lshr_b32 s{sT}, s2, 3")
    a(f"s_and_b32 s{sT2}, s{sT}, 3")
    a(f"s_lshl_b32 s{sROW0}, s{sSUB}, 2")
    a(f"s_add_u32 s{sROW0}, s{sROW0}, s{sT2}")
    a(f"s_mul_i32 s{sROW0}, s{sROW0}, {RT}")
    a(f"s_lshr_b32 s{sT}, s{sT}, 2")
    a(f"s_lshr_b32 s{sTYPE}, s{sT}, 2")
    a(f"s_and_b32 s{sSL}, s{sT}, 3")
    a("v_and_b32 v3, 31, v2")
    a("v_lshrrev_b32 v4, 5, v2")
    a(f"s_add_u32 s{sT}, s{sWAVE}, 4"); a(f"s_and_b32 s{sT}, s{sT}, 7"); a(f"s_lshl_b32 s{sT}, s{sT}, 2")
    a(f"v_add_u32 v61, s{sT}, v{vSY}")
    a("ds_write_b32 v61, v40")
    a(f"s_cmp_ge_u32 s{sWAVE}, 6"); a("s_cbranch_scc1 K1_PART")
    a(f"s_cmp_lt_u32 s{sWAVE}, 4"); a("s_cbranch_scc1 K1_GEMM")

    def scalar_pf(pair, half):
        if not spf: return
        a(f"s_lshr_b32 s{sT}, s2, 5"); a(f"s_lshl_b32 s{sT}, s{sT}, 1"); a(f"s_add_u32 s{sT}, s{sT}, {half}")
        a(f"s_lshl_b32 s{sT}, s{sT}, 11")
        a(f"s_lshl_b32 s{sT2}, s{sROW0}, 9"); a(f"s_add_u32 s{sT}, s{sT}, s{sT2}")
        a(f"s_lshl_b32 s{sT2}, {pair}, 15"); a(f"s_add_u32 s{sT}, s{sT}, s{sT2}")
        a(f"s_min_u32 s{sT}, s{sT}, {N*512-16*128}")
        a(f"s_add_u32 s72, s16, s{sT}"); a("s_addc_u32 s73, s17, 0")
        for i in range(16): a(f"s_load_dword s74, s[72:73], {128*i}")

    sLW=76; sM=72; sSO=73; sXM=77; sXO=78
    a(f"s_sub_u32 s{sLW}, s{sWAVE}, 4")
    a("v_lshrrev_b32 v8, 3, v2")
    a("v_bfe_u32 v9, v2, 4, 1")
    a("v_bfe_u32 v10, v2, 2, 1")
    a("v_xor_b32 v9, v9, v10")
    a("v_lshlrev_b32 v8, 9, v8")
    a("v_lshl_add_u32 v8, v9, 6, v8")
    a("v_and_b32 v9, 3, v2")
    a("v_lshl_add_u32 v8, v9, 4, v8")
    a(f"s_lshl_b32 s{sT}, s{sSL}, 7")
    a(f"v_add_u32 v8, s{sT}, v8")
    a("v_xor_b32 v9, v3, v4")
    a("v_lshlrev_b32 v9, 4, v9")
    a("v_lshl_add_u32 v9, v4, 9, v9")
    a(f"s_lshl_b32 s{sXM}, s{sLW}, 13")
    for j in range(8):
        a(f"v_xor_b32 v{12+j}, {(2*j)<<4}, v9")
        a(f"v_add_u32 v{12+j}, {j*1024}, v{12+j}")
        a(f"v_add_u32 v{12+j}, s{sXM}, v{12+j}")
    a(f"s_lshl_b32 s{sXO}, s{sROW0}, 9")
    a(f"s_lshr_b32 s{sT}, s2, 3"); a(f"s_and_b32 s{sT}, s{sT}, 3"); a(f"s_lshl_b32 s{sT}, s{sT}, 15")
    a(f"s_lshl_b32 s{sT2}, s{sSL}, 7"); a(f"s_add_u32 s{sT}, s{sT}, s{sT2}")
    a("v_lshlrev_b32 v20, 9, v2"); a(f"v_add_u32 v20, s{sT}, v20")
    a("s_waitcnt lgkmcnt(0)")
    srd(a, sX, 16, 17, N*512)
    a(f"s_cmp_eq_u32 s{sTYPE}, 0")
    a(f"s_cselect_b32 s{sT}, {256*512}, 0")
    a(f"s_cselect_b32 s{sQ}, s26, s24")
    a(f"s_cselect_b32 s{sQ+1}, s27, s25")
    a(f"s_add_u32 s{sP}, s28, s{sT}"); a(f"s_addc_u32 s{sP+1}, s29, 0")
    a(f"s_cmp_eq_u32 s{sLW}, 0")
    a(f"s_cselect_b32 s{sP}, s{sP}, s{sQ}"); a(f"s_cselect_b32 s{sP+1}, s{sP+1}, s{sQ+1}")
    a(f"s_mov_b32 s{sP+2}, {256*512}"); a(f"s_mov_b32 s{sP+3}, 0x20000")
    if wtouch:
        a(f"buffer_load_dword v22, v20, s[{sP}:{sP+3}], 0 offen")
    a(f"s_lshl_b32 s{sM}, s{sLW}, 15"); a(f"s_add_u32 s{sM}, s{sM}, {L_W}")
    for i in range(32):
        a(f"s_add_u32 m0, s{sM}, {i*1024}")
        a(f"s_mov_b32 s{sT}, {i*4096}")
        a(f"buffer_load_dwordx4 v8, s[{sP}:{sP+3}], s{sT} offen lds")
        if i==1:
            a("s_barrier"); stamp(1)
    def xdma(blk, ldsbase):
        a(f"s_add_u32 s{sT}, s{sXO}, {blk*16384}")
        for j in range(8):
            if blk==9 and j==5:
                a(f"s_cmp_eq_u32 s{sLW}, 1"); a("s_cbranch_scc1 K1_X9D")
            a(f"s_add_u32 m0, s{sXM}, {ldsbase+j*1024}")
            a("s_nop 0")
            a(f"buffer_load_dwordx4 v{12+j}, s[{sX}:{sX+3}], s{sT} offen lds")
        if blk==9: a.label("K1_X9D")
    xdma(0,L_X); xdma(1,L_X+16384)
    a("s_waitcnt vmcnt(16)"); signal(None,1); stamp(2)
    xdma(2,L_X+32768); xdma(3,L_X+49152)
    a("s_waitcnt vmcnt(16)"); signal(None,2); stamp(3)
    xdma(8,L_X+65536); xdma(9,L_X+81920)
    a("s_waitcnt vmcnt(13)"); signal(None,3); stamp(4)
    wait('G',1); stamp(5)
    xdma(4,L_W); xdma(5,L_W+16384)
    a("s_waitcnt vmcnt(16)"); signal(None,4); stamp(6)
    xdma(6,L_W+32768); xdma(7,L_W+49152)
    signal(None,5); stamp(7)
    a("s_waitcnt vmcnt(16)"); signal(None,6); stamp(8)
    a("s_waitcnt vmcnt(0)"); signal(None,7)
    a("s_waitcnt lgkmcnt(0)")
    dump()
    a("s_endpgm")

    a.label("K1_PART")
    D=8; S=13; RK=18; EA=64; SL=24; PA=30
    sPW=78
    a("s_setprio 3")
    a(f"s_sub_u32 s{sPW}, s{sWAVE}, 6")
    a(f"s_sub_u32 s{sCH}, s2, 6")
    a(f"s_lshl_b32 s{sCH}, s{sCH}, 1"); a(f"s_add_u32 s{sCH}, s{sCH}, s{sPW}")
    a(f"s_mul_i32 s{sCH}, s{sCH}, 320")
    a("v_lshlrev_b32 v7, 2, v2")
    a(f"s_lshl_b32 s75, s{sCH}, 2")
    a("s_waitcnt lgkmcnt(0)")
    srd(a, sD, 22, 23, E*4); srd(a, sS, 20, 21, E*4)
    a("s_cmp_lt_u32 s2, 6"); a("s_cbranch_scc1 K1_SPECIAL")
    for r in range(5): a(f"buffer_load_dword v{D+r}, v7, s[{sD}:{sD+3}], s75 offen offset:{256*r}{nt}")
    for r in range(5): a(f"buffer_load_dword v{S+r}, v7, s[{sS}:{sS+3}], s75 offen offset:{256*r}{nt}")
    a("s_barrier")
    a("s_setprio 0")
    stamp(1)
    srd(a, sEAI, 18, 19, E*32)
    srd(a, sREC, 34, 35, NSLOT*4, WS_REC); srd(a, sEAO, 34, 35, NSLOT*32, WS_EA)
    a(f"s_lshl_b32 s{sT}, s{sSUB}, 2"); a(f"v_mov_b32 v48, s{sT}")
    a("v_mov_b32 v43, 1")
    a(f"s_lshl_b32 s{sT}, s{sPW}, 10")
    a("v_lshlrev_b32 v50, 3, v2"); a(f"v_add_u32 v50, s{sT}, v50")
    a(f"v_add_u32 v42, {L_HIST}, v50")
    a(f"s_lshl_b32 s{sT}, s{sSUB}, 12"); a(f"s_add_u32 s{sT}, s{sT}, {WS_CNT}")
    a(f"v_add_u32 v50, s{sT}, v50")
    a(f"s_mov_b32 s{sT}, 214749")
    a("s_waitcnt vmcnt(0)")
    stamp(2)
    for r in range(5):
        a(f"v_mul_u32_u24 v44, s{sT}, v{D+r}")
        a("v_lshrrev_b32 v44, 22, v44")
        a(f"v_lshlrev_b32 v47, 2, v44")
        a(f"v_add_u32 v46, {L_HIST}, v47")
        a(f"ds_add_rtn_u32 v{RK+r}, v46, v43")
        a("v_mul_u32_u24 v45, 625, v44")
        a("v_add_u32 v45, 31, v45")
        a("v_lshrrev_b32 v45, 5, v45")
        a(f"v_sub_u32 v45, v{D+r}, v45")
        a(f"v_mov_b32 v{D+r}, v47")
        a("v_and_b32 v46, 16, v45")
        a("v_and_b32 v47, 1, v45")
        a("v_lshl_add_u32 v46, v47, 3, v46")
        a("v_bfe_u32 v45, v45, 1, 3")
        a("v_or_b32 v45, v45, v46")
        a("v_lshl_add_u32 v45, v44, 5, v45")
        a(f"v_lshlrev_b32 v{S+r}, 3, v{S+r}")
        a(f"v_lshl_add_u32 v{S+r}, v45, 17, v{S+r}")
    a("s_waitcnt lgkmcnt(0)")
    signal(None,1)
    stamp(3)
    scalar_pf(4, f"s{sPW}")
    def probe():
        a.label("K1_POLL")
        a("global_load_dword v49, v48, s[32:33] sc1")
        a("s_waitcnt vmcnt(0)")
        a(f"v_readfirstlane_b32 s{sT}, v49")
        a(f"s_cmp_eq_u32 s{sT}, 0")
        a("s_cbranch_scc1 K1_POLL")
    if probe_early:
        probe()
    wait('P',1)
    a("ds_read_b64 v[52:53], v42"); a("ds_read_b64 v[54:55], v42 offset:512")
    stamp(4)
    wait('L',gol)
    if not probe_early: probe()
    stamp(5)
    a("global_atomic_add_x2 v[52:53], v50, v[52:53], s[34:35] sc0")
    a("global_atomic_add_x2 v[54:55], v50, v[54:55], s[34:35] offset:512 sc0")
    if touch:
        a("v_lshlrev_b32 v51, 20, v2")
        a("global_load_dword v51, v51, s[34:35]")
    a(f"s_lshl_b32 s72, s{sCH}, 5"); a("s_add_u32 s73, s72, 4096"); a("s_add_u32 s74, s72, 8192")
    a("v_lshlrev_b32 v6, 4, v2")
    for r in range(10):
        a(f"buffer_load_dwordx4 v[{EA+4*r}:{EA+4*r+3}], v6, s[{sEAI}:{sEAI+3}], s{72+r//4} offen offset:{1024*(r%4)}{nt}")
    a(f"s_waitcnt vmcnt({10+touch})")
    a("ds_write_b64 v42, v[52:53]"); a("ds_write_b64 v42, v[54:55] offset:512")
    a("s_waitcnt lgkmcnt(0)")
    signal(None,2)
    stamp(6)
    wait('P',2)
    for r in range(5):
        a(f"v_add_u32 v44, {L_HIST}, v{D+r}")
        a(f"ds_read_b32 v{SL+r}, v44")
    a(f"s_lshl_b32 s{sT}, s{sSUB}, 7")
    a("v_lshrrev_b32 v46, 1, v2"); a("v_lshlrev_b32 v46, 2, v46")
    a("s_waitcnt lgkmcnt(0)")
    for r in range(5):
        a(f"v_add_u32 v{RK+r}, v{SL+r}, v{RK+r}")
        a(f"v_lshl_add_u32 v{SL+r}, v{D+r}, 8, v{RK+r}")
        a(f"v_add_u32 v{SL+r}, s{sT}, v{SL+r}")
        a(f"v_cmp_le_u32 vcc, {CAP}, v{RK+r}")
        a(f"s_cbranch_vccnz K1_OV{r}")
        a.label(f"K1_NOV{r}")
        a(f"ds_bpermute_b32 v{PA+2*r}, v46, v{SL+r}")
        a(f"ds_bpermute_b32 v{PA+2*r+1}, v46, v{SL+r} offset:128")
        a(f"v_lshlrev_b32 v{RK+r}, 2, v{SL+r}")
    if not noscat:
        for r in range(5): a(f"buffer_store_dword v{S+r}, v{RK+r}, s[{sREC}:{sREC+3}], 0 offen{sc_mod}")
    a("v_and_b32 v47, 1, v2"); a("v_lshlrev_b32 v47, 4, v47")
    a(f"s_waitcnt vmcnt({0 if noscat else 5}) lgkmcnt(0)")
    stamp(7)
    for r in range(10):
        a(f"v_lshl_add_u32 v{PA+r}, v{PA+r}, 5, v47")
        if not noscat: a(f"buffer_store_dwordx4 v[{EA+4*r}:{EA+4*r+3}], v{PA+r}, s[{sEAO}:{sEAO+3}], 0 offen{sc_mod}")
    stamp(8)
    if wb:
        a("s_cmp_lt_u32 s2, 248"); a("s_cbranch_scc1 K1_NOWB")
        a(f"s_cmp_eq_u32 s{sPW}, 0"); a("s_cbranch_scc1 K1_NOWB")
        a("s_waitcnt vmcnt(0)")
        stamp(9)
        a("buffer_wbl2 sc1")
        a("s_waitcnt vmcnt(0)")
        stamp(10)
        a.label("K1_NOWB")
    dump()
    a("s_endpgm")
    for r in range(5):
        a.label(f"K1_OV{r}")
        a(f"s_and_saveexec_b64 s[76:77], vcc")
        a(f"s_lshl_b32 s{sT2}, s{sSUB}, 12"); a(f"s_add_u32 s{sT2}, s{sT2}, {WS_CNT+2048}")
        a(f"v_mov_b32 v52, s{sT2}"); a("v_mov_b32 v53, 1")
        a("global_atomic_add v53, v52, v53, s[34:35] sc0")
        a(f"s_mul_i32 s{sT2}, s{sSUB}, {OVFCAP}"); a(f"s_add_u32 s{sT2}, s{sT2}, {OVF0}")
        a("s_waitcnt vmcnt(0)")
        a(f"v_add_u32 v{SL+r}, s{sT2}, v53")
        a("s_mov_b64 exec, s[76:77]")
        a(f"s_branch K1_NOV{r}")

    a.label("K1_SPECIAL")
    a("s_cmp_lt_u32 s2, 4"); a("s_cbranch_scc0 K1_SP2")
    a(f"s_lshl_b32 s{sT}, s2, 1"); a(f"s_add_u32 s{sT2}, s{sT}, s{sPW}")
    a(f"s_lshl_b32 s{sT}, s{sT2}, 12"); a(f"s_add_u32 s{sT}, s{sT}, {WS_CNT}")
    a("v_lshlrev_b32 v1, 4, v2"); a(f"v_add_u32 v1, s{sT}, v1")
    for r in range(4): a(f"v_mov_b32 v{44+r}, 0")
    for r in range(3): a(f"global_store_dwordx4 v1, v[44:47], s[34:35] offset:{1024*r} sc0 sc1")
    a("s_barrier")
    a("s_waitcnt vmcnt(0)")
    a(f"s_lshl_b32 s{sT}, s{sT2}, 2")
    a(f"v_mov_b32 v44, s{sT}"); a("v_mov_b32 v45, 1")
    a("s_mov_b64 exec, 1")
    a("global_store_dword v44, v45, s[32:33] sc0 sc1")
    a("s_mov_b64 exec, -1")
    stamp(2)
    dump()
    a("s_endpgm")
    a.label("K1_SP2")
    a("s_barrier")
    a(f"s_sub_u32 s{sT}, s2, 4"); a(f"s_lshl_b32 s{sT}, s{sT}, 1"); a(f"s_add_u32 s{sT2}, s{sT}, s{sPW}")
    a(f"s_lshl_b32 s{sT}, s{sT2}, 7"); a(f"s_add_u32 s{sT}, s{sT}, {512*512}")
    a("v_lshlrev_b32 v1, 12, v4"); a("v_lshl_add_u32 v1, v3, 1, v1"); a(f"v_add_u32 v1, s{sT}, v1")
    for c in range(2):
        for j in range(8): a(f"global_load_ushort v{24+8*c+j}, v1, s[28:29] offset:{512*j+64*c}")
    a("s_waitcnt vmcnt(0)")
    for j in range(16):
        a(f"v_lshlrev_b32 v{24+j}, 16, v{24+j}")
        a(f"v_mul_f32 v{24+j}, {hex(NLOG2E)}, v{24+j}")
    for j in range(8): a(f"v_cvt_pk_bf16_f32 v{44+j}, v{24+2*j}, v{25+2*j}")
    a(f"s_lshl_b32 s{sT}, s{sT2}, 11"); a(f"s_add_u32 s{sT}, s{sT}, {WS_CF}")
    a("v_lshlrev_b32 v1, 4, v2"); a(f"v_add_u32 v1, s{sT}, v1")
    a("global_store_dwordx4 v1, v[44:47], s[34:35] sc1")
    a("global_store_dwordx4 v1, v[48:51], s[34:35] offset:1024 sc1")
    a("s_endpgm")
    a.label("K1_GEMM")
    WP=128; WQ=192; ACC=[64,96]; AF=40; AA=32; T0=8; T1=16
    vWP=6; vWQ=5; vSO=7; vC=24; vTINY=25; vSC=26
    a(f"s_mov_b32 s{sBIG}, {hex(BIG)}")
    a(f"s_mov_b32 s{sMASK}, 0xffff0000")
    a("v_and_b32 v5, 15, v3")
    a("v_xor_b32 v5, v5, v4")
    a("v_lshlrev_b32 v5, 4, v5")
    a("v_lshl_add_u32 v5, v3, 9, v5")
    a(f"s_lshr_b32 s{sT}, s{sWAVE}, 1")
    a(f"s_lshl_b32 s{sT}, s{sT}, 14")
    a(f"s_add_u32 s{sT}, s{sT}, {L_X}")
    a(f"v_add_u32 v5, s{sT}, v5")
    for s in range(8): a(f"v_xor_b32 v{AA+s}, {s<<5}, v5")
    a("v_bfe_u32 v6, v2, 2, 2")
    a("v_lshl_add_u32 v7, v4, 3, v6")
    a("v_lshlrev_b32 v7, 7, v7")
    a("v_lshrrev_b32 v6, 1, v6")
    a("v_lshl_add_u32 v7, v6, 6, v7")
    a("v_bfe_u32 v6, v2, 4, 1")
    a("v_lshl_add_u32 v7, v6, 5, v7")
    a("v_and_b32 v6, 3, v2")
    a("v_lshl_add_u32 v7, v6, 3, v7")
    a(f"v_add_u32 v7, {L_W}, v7")
    a(f"s_and_b32 s{sT}, s{sWAVE}, 1")
    a(f"s_cmp_eq_u32 s{sTYPE}, 0")
    a(f"s_cselect_b32 s{sT2}, 64, 0x8000")
    a(f"s_mul_i32 s{sT2}, s{sT2}, s{sT}")
    a(f"v_xor_b32 v{vWP}, s{sT2}, v7")
    a(f"s_cmp_eq_u32 s{sTYPE}, 0")
    a(f"s_cselect_b32 s{sT2}, 0x8000, 64")
    a(f"v_xor_b32 v{vWQ}, s{sT2}, v{vWP}")
    a(f"s_cmp_eq_u32 s{sT}, 0")
    a(f"s_cselect_b32 s{sT2}, {hex(NLOG2E)}, 1.0")
    a(f"v_mov_b32 v{vSC}, s{sT2}")
    a(f"v_lshlrev_b32 v{vSO}, 10, v4")
    a(f"v_lshl_add_u32 v{vSO}, v3, 2, v{vSO}")
    a(f"s_lshl_b32 s{sT}, s{sT}, 7")
    a(f"v_add_u32 v{vSO}, s{sT}, v{vSO}")
    a(f"s_lshr_b32 s{sT}, s{sWAVE}, 1")
    a(f"s_lshl_b32 s{sT}, s{sT}, 5")
    a(f"s_add_u32 s{sRB}, s{sROW0}, s{sT}")
    a(f"s_lshl_b32 s{sRB}, s{sRB}, 8")
    a(f"s_add_u32 s{sRB2}, s{sRB}, 4096")
    a(f"v_mov_b32 v{vC}, {hex(NLOG2E)}"); a(f"v_mov_b32 v{vTINY}, 0x0da24260")
    a("s_waitcnt lgkmcnt(0)")
    a(f"s_lshr_b32 s75, s{sWAVE}, 1"); a(f"s_and_b32 s76, s{sWAVE}, 1")
    a("s_barrier")
    scalar_pf("s75","s76")
    stamp(1)
    a(f"s_mul_i32 s{sT}, s{sSL}, {TS}")
    a(f"s_mul_i32 s{sT2}, s{sTYPE}, {4*TS}")
    a(f"s_add_u32 s{sT}, s{sT}, s{sT2}")
    a(f"s_add_u32 s{sT}, s{sT}, {WS_T}")
    srd(a, sO, 34, 35, TS, f"s{sT}")
    a(f"s_add_u32 s{sT}, s{sROW0}, {RT}"); a(f"s_min_u32 s{sT}, s{sT}, {N}"); a(f"s_lshl_b32 s{sO+2}, s{sT}, 8")
    a("s_add_u32 s75, s75, 2")
    a("s_waitcnt lgkmcnt(0)")
    scalar_pf("s75","s76")
    wait('L',1)
    stamp(2)
    for s in range(16):
        for u in range(2):
            a(f"ds_read_b64_tr_b16 v[{WP+4*s+2*u}:{WP+4*s+2*u+1}], v{vWP} offset:{s*2048+u*512}")
            a(f"ds_read_b64_tr_b16 v[{WQ+4*s+2*u}:{WQ+4*s+2*u+1}], v{vWQ} offset:{s*2048+u*512}")
    a("s_waitcnt lgkmcnt(0)")
    signal(None,1)
    stamp(3)
    a("s_setprio 2")
    def aread(s, hi):
        return f"ds_read_b128 v[{AF+4*(s%4)}:{AF+4*(s%4)+3}], v{AA+(s&7)} offset:{(s>>3)*256+hi*32768}"
    def epi(typ, acc, i):
        AP=acc; AQ=acc+16; t0=T0+(i%8); t1=T1+(i%8)
        row=8*(i>>2)+(i&3); so = sRB if row<16 else sRB2
        def store(r):
            if nostore: return "s_nop 0"
            return f"buffer_store_dword v{r}, v{vSO}, s[{sO}:{sO+3}], s{so} offen offset:{(row%16)*256}{st_mod}"
        if typ==0:
            lo,hi=(t0,t1) if fmt=='B' else (t1,t0)
            first = f"v_mul_f32 v{t0}, v{vC}, v{AP+i}" if fmt=='B' else f"v_fma_f32 v{t0}, v{AP+i}, v{vC}, v{vTINY}"
            g1=[f"v_rcp_f32 v{t1}, v{AQ+i}", first, f"v_med3_f32 v{t1}, v{t1}, -s{sBIG}, s{sBIG}"]
            g2=[f"v_cvt_pk_bf16_f32 v{lo}, v{lo}, 0", f"v_add_u32 v{hi}, 0x8000, v{hi}", f"v_sub_u32 v{hi}, v{hi}, v{lo}",
                f"v_and_or_b32 v{hi}, v{hi}, s{sMASK}, v{lo}", store(hi)]
        else:
            g1=[f"v_mul_f32 v{t0}, v{vSC}, v{AP+i}", f"v_mul_f32 v{t1}, v{vSC}, v{AQ+i}"]
            g2=[f"v_cvt_pk_bf16_f32 v{t0}, v{t0}, v{t1}", store(t0)]
        return g1,g2
    def gemm(typ):
        for r in range(5):
            wait('L', [2,3,4,6,7][r])
            stamp(4+r)
            hi = 1 if r in (1,4) else 0
            acc=ACC[r&1]; pacc=ACC[1-(r&1)]
            a(aread(0,hi)); a(aread(1,hi)); a(aread(2,hi))
            for s in range(16):
                if s+3<16: a(aread(s+3,hi))
                a(f"s_waitcnt lgkmcnt({min(3,15-s)})")
                f=AF+4*(s%4)
                cP = "0" if s==0 else f"v[{acc}:{acc+15}]"
                cQ = "0" if s==0 else f"v[{acc+16}:{acc+31}]"
                g1,g2 = epi(typ,pacc,s) if r>0 else ([],[])
                a(f"v_mfma_f32_32x32x16_bf16 v[{acc}:{acc+15}], v[{f}:{f+3}], v[{WP+4*s}:{WP+4*s+3}], {cP}")
                a.ext(g1)
                a(f"v_mfma_f32_32x32x16_bf16 v[{acc+16}:{acc+31}], v[{f}:{f+3}], v[{WQ+4*s}:{WQ+4*s+3}], {cQ}")
                a.ext(g2)
            if r>0:
                bp=[0,1,4,2,3]; d=(bp[r]-bp[r-1])*64*256
                a(f"s_add_i32 s{sRB}, s{sRB}, {d}"); a(f"s_add_i32 s{sRB2}, s{sRB2}, {d}")
            if r==1:
                for s in range(8): a(f"v_add_u32 v{AA+s}, 0x10000, v{AA+s}")
            if r==2:
                for s in range(8): a(f"v_subrev_u32 v{AA+s}, 0x20000, v{AA+s}")
        stamp(9)
        a("s_nop 11")
        for g in range(0,16,4):
            gs=[epi(typ,ACC[0],i) for i in range(g,g+4)]
            for k in range(3):
                for x in gs:
                    if k<len(x[0]): a(x[0][k])
            for k in range(5):
                for x in gs:
                    if k<len(x[1]): a(x[1][k])
        stamp(10)
        dump()
        a("s_endpgm")
    a(f"s_cmp_eq_u32 s{sTYPE}, 0"); a("s_cbranch_scc0 K1_GU")
    gemm(0)
    a.label("K1_GU")
    gemm(1)

    a.label("K1_END")
    a("s_endpgm")
    return a
```

```python
from asmlib import *
from k1 import N,E,WS_CF,WS_CNT,WS_REC,WS_T,TS,WS_U,WS_EA,NSUB,CAP,OVF0,OVFCAP,NSLOT,NLOG2E,srd,WS_STAMP
LCAP=1024+128
LO_OFF=0; LO_E=LCAP*4; LO_OH=2*LCAP*4
LW=12288
K2_LDS=8*LW
OHS=80

def resolve(body):
    out=[]; n=len(body)
    for i,x in enumerate(body):
        if isinstance(x,str): out.append(x)
        elif x[0]=='wait':
            parts=[]
            for kind,tag in x[1]:
                c=0; j=i-1; steps=0
                while True:
                    y=body[j%n]
                    if not isinstance(y,str) and y[0]==kind:
                        if y[1]==tag: break
                        c+=1
                    j-=1; steps+=1
                    assert steps<=n, ("tag not found",tag)
                parts.append((kind,c))
            vm=[c for k,c in parts if k=='vm']; ds=[c for k,c in parts if k=='ds']
            s="s_waitcnt"
            if vm: s+=f" vmcnt({min(min(vm),63)})"
            if ds: s+=f" lgkmcnt({min(min(ds),15)})"
            out.append(s)
        else: out.append(x[2])
    return out

def gen_k2(var='B', prio=0, pk=0, stamps=False, clk='s_memrealtime', ld_mod='', ea_mod='', out_mod='', nog=False, drop='', dbg=False, leak=None, wsb=0):
    a=Asm()
    def stamp(i):
        if not stamps: return
        a(f"{clk} s[90:91]"); a("s_waitcnt lgkmcnt(0)"); a(f"s_mov_b32 s{92+i}, s90")
    ACC=16; XAF=48; CF=64; SEL=72; G=88; Z=152; P=184; OFF=192; EA=208; ST=216; S=224; L2=232; XU=236
    I=SEL
    vLANE=1; vN=2; vH=3; vPOFF=4; vPE=5; vST=6; vS=7; vKG16=8; vONE=9; vZERO=10; vOHB=246; vM31=247; vUO=248; vTE=249
    sT=12; sU=16; sREC=20; sEA=24; sOUT=28
    sWAVE=4; sB=5; sSTART=6; sSL=7; sA=8; sA2=9; sLB=10; sNT=11
    sC=40; sV=48; sPOS=56; sCE=57; sOS=58; sOC=59; sON=60; sK=61
    a("s_cmp_ge_u32 s2, 256"); a("s_cbranch_scc1 K2_END")
    stamp(0)
    a("s_load_dwordx2 s[34:35], s[0:1], 72")
    a("s_load_dwordx2 s[32:33], s[0:1], 56")
    a("v_lshrrev_b32 v11, 6, v0")
    a(f"v_and_b32 v{vLANE}, 63, v0")
    a(f"v_readfirstlane_b32 s{sWAVE}, v11")
    a(f"v_and_b32 v{vN}, 31, v{vLANE}")
    a(f"v_lshrrev_b32 v{vH}, 5, v{vLANE}")
    a(f"s_and_b32 s{sSL}, s2, 3")
    a(f"s_and_b32 s{sA}, s2, 4"); a(f"s_lshl_b32 s{sA}, s{sA}, 6")
    a(f"s_and_b32 s{sB}, s2, 0xf8")
    a(f"s_add_u32 s{sB}, s{sB}, s{sA}"); a(f"s_add_u32 s{sB}, s{sB}, s{sWAVE}")
    a(f"s_mul_i32 s{sSTART}, s{sB}, 625"); a(f"s_add_u32 s{sA}, s{sSTART}, {625+31}"); a(f"s_add_u32 s{sSTART}, s{sSTART}, 31")
    a(f"s_lshr_b32 s{sSTART}, s{sSTART}, 5"); a(f"s_lshr_b32 s{sA}, s{sA}, 5")
    a(f"s_sub_u32 s36, s{sA}, s{sSTART}")
    a(f"s_mul_i32 s{sLB}, s{sWAVE}, {LW}")
    a(f"v_lshlrev_b32 v11, 2, v{vLANE}")
    a(f"v_lshlrev_b32 v{vUO}, 8, v{vH}"); a(f"v_lshl_add_u32 v{vUO}, v{vN}, 2, v{vUO}")
    a(f"s_lshl_b32 s62, s{sB}, 12")
    a(f"s_lshl_b32 s63, s{sB}, 2")
    a(f"s_mul_i32 s64, s{sSL}, {TS}")
    a(f"s_lshl_b32 s{sA2}, s{sSTART}, 8")
    a(f"s_add_u32 s37, s64, s{sA2}"); a(f"s_add_u32 s37, s37, {WS_U}")
    a(f"s_movk_i32 s{sK}, 0x1000")
    a("s_waitcnt lgkmcnt(0)")
    if wsb: a(f"s_add_u32 s34, s34, {wsb}"); a("s_addc_u32 s35, s35, 0")
    srd(a, sREC, 34, 35, NSLOT*4, WS_REC)
    R0=Z
    for i in range(8): a(f"buffer_load_dword v{R0+i}, v11, s[{sREC}:{sREC+3}], s62 offen offset:{512*i}")
    a(f"s_add_u32 s38, s34, s63"); a("s_addc_u32 s39, s35, 0")
    for i in range(8): a(f"s_load_dword s{sC+i}, s[38:39], {WS_CNT+4096*i}")
    for i in range(8): a(f"s_load_dword s{sV+i}, s[34:35], {WS_CNT+4096*i+2048}")
    srd(a, sU, 34, 35, 0, "s37")
    a(f"s_sub_u32 s{sU+2}, {TS}, s{sA2}")
    def uload(dst, b):
        o=[]
        for i in range(10):
            off=i*512+b*128
            so="0" if off<4096 else f"s{sK}"
            o.append(f"buffer_load_dword v{dst+i}, v{vUO}, s[{sU}:{sU+3}], {so} offen offset:{off%4096}")
        return o
    XAR=Z+16
    a.ext(uload(XAR,0))
    a(f"s_lshl_b32 s{sA2}, s{sSL}, 11")
    a(f"v_lshlrev_b32 v13, 4, v{vLANE}"); a(f"v_add_u32 v13, s{sA2}, v13")
    a(f"global_load_dwordx4 v[{CF}:{CF+3}], v13, s[34:35] offset:{WS_CF}")
    a(f"global_load_dwordx4 v[{CF+4}:{CF+7}], v13, s[34:35] offset:{WS_CF+1024}")
    a(f"s_add_u32 s{sA}, s64, {WS_T}")
    a(f"s_add_u32 s{sT}, s34, s{sA}"); a(f"s_addc_u32 s{sT+1}, s35, 0")
    a(f"s_and_b32 s{sT+1}, s{sT+1}, 0xffff"); a(f"s_or_b32 s{sT+1}, s{sT+1}, 0x80000000")
    a(f"s_mov_b32 s{sT+2}, -1"); a(f"s_mov_b32 s{sT+3}, 0xc00000")
    srd(a, sEA, 34, 35, NSLOT*32, WS_EA)
    a(f"s_lshl_b32 s{sA}, s{sSTART}, 9"); a(f"s_lshl_b32 s{sA2}, s{sSL}, 7"); a(f"s_add_u32 s{sA}, s{sA}, s{sA2}")
    srd(a, sOUT, 32, 33, 0, f"s{sA}")
    a(f"s_lshl_b32 s{sOUT+2}, s36, 9"); a(f"s_sub_u32 s{sOUT+2}, s{sOUT+2}, 384")
    for r in range(4): a(f"v_mov_b32 v{P+r}, 0")
    a(f"v_lshlrev_b32 v14, 4, v{vLANE}"); a(f"v_add_u32 v14, s{sLB}, v14")
    for r in range(3): a(f"ds_write_b128 v14, v[{P}:{P+3}] offset:{LO_OH+1024*r}")
    a(f"v_mov_b32 v{vONE}, 0x3f80"); a(f"v_mov_b32 v{vZERO}, 0"); a(f"v_mov_b32 v{vM31}, 31")
    a(f"v_lshlrev_b32 v{vKG16}, 4, v{vH}")
    a(f"v_mul_u32_u24 v{vOHB}, {OHS}, v{vN}"); a(f"v_add_u32 v{vOHB}, s{sLB}, v{vOHB}")
    a(f"v_add_u32 v{vST}, v{vOHB}, v{vKG16}")
    a(f"v_bfe_u32 v14, v{vLANE}, 2, 2"); a(f"v_lshl_add_u32 v14, v{vH}, 2, v14"); a(f"v_mul_u32_u24 v{vS}, {OHS}, v14")
    a(f"v_bfe_u32 v14, v{vLANE}, 4, 1"); a(f"v_lshl_add_u32 v{vS}, v14, 5, v{vS}")
    a(f"v_and_b32 v14, 1, v{vLANE}"); a(f"v_lshl_add_u32 v{vS}, v14, 4, v{vS}")
    a(f"v_bfe_u32 v14, v{vLANE}, 1, 1"); a(f"v_lshl_add_u32 v{vS}, v14, 3, v{vS}")
    a(f"v_add_u32 v{vS}, s{sLB}, v{vS}")
    if var=='B':
        a(f"v_lshlrev_b32 v14, 2, v{vH}"); a(f"v_sub_u32 v14, v{vN}, v14")
        for q in range(4):
            for rho in range(4):
                a(f"v_cmp_eq_u32 s[{66+2*rho}:{67+2*rho}], {8*q+rho}, v14")
            for rho in range(4):
                a(f"v_cndmask_b32 v{SEL+4*q+rho}, v{vZERO}, v{vONE}, s[{66+2*rho}:{67+2*rho}]")
    for i in range(32): a(f"v_mov_b32 v{ACC+i}, 0")
    a(f"s_lshl_b32 s{sCE}, s{sB}, 15")
    a(f"v_lshlrev_b32 v12, 5, v{vLANE}"); a(f"v_add_u32 v12, s{sCE}, v12")
    a(f"v_add_u32 v15, s{sLB}, v11")
    stamp(1)
    def stage(rec, vaddr, vea, eaadd):
        t0,t1=P+4,P+5
        o=[f"v_bfe_u32 v{t1}, v{rec}, 17, 5",
           f"v_and_b32 v{t0}, 0x1fff8, v{rec}"]
        if isinstance(eaadd,str): o.append(f"v_add3_u32 v{t1}, v{t1}, v{vea}, {eaadd}")
        else: o.append(f"v_add_u32 v{t1}, v{t1}, v{vea}")
        o.append(f"ds_write2st64_b32 v{vaddr}, v{t0}, v{t1} offset0:{LO_OFF//256} offset1:{LO_E//256}")
        return o
    a("s_waitcnt lgkmcnt(0)")
    stamp(2)
    a(f"s_mov_b32 s{sPOS}, 0"); a(f"s_mov_b32 s{sCE}, 0")
    for i in range(8):
        a(f"s_min_u32 s{sC+i}, s{sC+i}, {CAP}")
        a(f"v_lshl_add_u32 v13, s{sPOS}, 2, v15")
        a(f"s_waitcnt vmcnt({12+7-i})")
        a.ext(stage(R0+i, 13, 12, f"s{sCE}"))
        a(f"s_cmp_gt_u32 s{sC+i}, 64"); a(f"s_cbranch_scc1 K2_BIG{i}")
        a.label(f"K2_BIGR{i}")
        a(f"s_add_u32 s{sPOS}, s{sPOS}, s{sC+i}")
        a(f"s_add_u32 s{sCE}, s{sCE}, 4096")
    a(f"s_or_b32 s{sOS}, s{sV}, s{sV+1}")
    for i in range(2,8): a(f"s_or_b32 s{sOS}, s{sOS}, s{sV+i}")
    a(f"s_cselect_b32 s{sOS}, 0, 8"); a(f"s_mov_b32 s{sOC}, 0")
    a("s_mov_b32 s65, 1")
    a("s_mov_b32 s74, 0")
    stamp(3)
    a.label("K2_PASS")
    a(f"v_mov_b32 v14, 0x7fffffff")
    a(f"v_lshl_add_u32 v13, s{sPOS}, 2, v15")
    a(f"ds_write2st64_b32 v13, v{vZERO}, v14 offset0:{LO_OFF//256} offset1:{LO_E//256}")
    a(f"ds_write2st64_b32 v13, v{vZERO}, v14 offset0:{LO_OFF//256+1} offset1:{LO_E//256+1}")
    a(f"s_add_u32 s{sNT}, s{sPOS}, 31"); a(f"s_lshr_b32 s{sNT}, s{sNT}, 5"); a(f"s_max_u32 s{sNT}, s{sNT}, 1")
    a(f"v_add_u32 v{vPOFF}, s{sLB}, v{vKG16}")
    a(f"v_lshl_add_u32 v{vPE}, v{vN}, 2, s{sLB}")
    def offread(extra=0):
        return [f"ds_read_b128 v[{OFF+4*q}:{OFF+4*q+3}], v{vPOFF} offset:{LO_OFF+32*q+extra}" for q in range(4)]
    def gload(buf, blk):
        return [f"buffer_load_dword v{G+32*buf+16*blk+i}, v{OFF+i}, s[{sT}:{sT+3}], 0 offen offset:{4*blk}{ld_mod}" for i in range(16)]
    def edec(p):
        return [f"v_bitop3_b32 v{vTE}, v{L2+2*p}, v{vM31}, v{vKG16} bitop3:0xba",
                f"v_and_b32 v{L2+2*p}, 31, v{L2+2*p}",
                f"v_lshl_add_u32 v{L2+2*p+1}, v{L2+2*p}, 1, v{vOHB}"]
    def eaload(p): return f"buffer_load_dwordx4 v[{EA+4*p}:{EA+4*p+3}], v{vTE}, s[{sEA}:{sEA+3}], 0 offen{ea_mod}"
    def eread(p, extra=0): return f"ds_read_b32 v{L2+2*p}, v{vPE} offset:{LO_E+extra}"
    def ohset(p): return f"ds_write_b16 v{L2+2*p+1}, v{vONE} offset:{LO_OH}"
    def ohclr(p): return f"ds_write_b16 v{L2+2*p+1}, v{vZERO} offset:{LO_OH}"
    def stread(): return [f"ds_read_b128 v[{ST+4*x}:{ST+4*x+3}], v{vST} offset:{LO_OH+32*x}" for x in range(2)]
    def sread(): return [f"ds_read_b64_tr_b16 v[{S+4*x+2*u}:{S+4*x+2*u+1}], v{vS} offset:{LO_OH+(16*x+8*u)*OHS}" for x in range(2) for u in range(2)]
    def mf(d,A,B,c):
        cs=f"v[{c}:{c+15}]" if isinstance(c,int) else c
        return f"v_mfma_f32_32x32x16_bf16 v[{d}:{d+15}], v[{A}:{A+3}], v[{B}:{B+3}], {cs}"
    def zm(p, blk):
        z=Z+16*blk; g=G+32*p+16*blk
        o=[mf(z,EA+4*p,CF+4*blk, g if var=='A' else "0"), mf(z,ST,XAF+8*blk,z), mf(z,ST+4,XAF+8*blk+4,z)]
        if var=='B': o+=[mf(z,SEL+4*q,g+4*q,z) for q in range(4)]
        return o
    a.ext(offread(0)); a(eread(0,0)); a(eread(1,128))
    a("s_waitcnt lgkmcnt(0)")
    a.ext(gload(0,0)); a.ext(edec(0)); a(eaload(0)); a.ext(gload(0,1))
    a.ext(offread(128))
    a(ohset(0)); a.ext(stread())
    a("s_cmp_eq_u32 s65, 0"); a("s_cbranch_scc1 K2_NOXA")
    a("s_mov_b32 s65, 0")
    a("s_waitcnt vmcnt(33)")
    a("s_mov_b32 s37, 0x05040100"); a("s_mov_b32 s38, 0x07060302")
    for b in range(2):
        for j in range(5): a(f"v_perm_b32 v{XAF+8*b+j}, v{XAR+2*j+1}, v{XAR+2*j}, s{37+b}")
        for j in range(5,8): a(f"v_mov_b32 v{XAF+8*b+j}, 0")
    a.label("K2_NOXA")
    a.ext(edec(1))
    a("s_waitcnt vmcnt(16) lgkmcnt(0)")
    stamp(4)
    zz=zm(0,0)
    ll=gload(1,0)+[eaload(1)]+gload(1,1)
    a.ext(merge(ll, zz, 0, 4*len(zz)))
    a.ext(offread(256))
    a(f"v_add_u32 v{vPOFF}, 384, v{vPOFF}")
    a(f"v_add_u32 v{vPE}, 256, v{vPE}")
    a("s_nop 7")
    hi=["s_setprio 1"] if prio==1 else []; lo=["s_setprio 0"] if prio==1 else []
    body=[]
    for p in range(2):
        if prio==2:
            body += [f"s_cmp_gt_u32 s{sNT}, 4", f"s_cbranch_scc1 K2_PR{p}", "s_setprio 2",
                     f"s_cmp_gt_u32 s{sNT}, 2", f"s_cbranch_scc1 K2_PR{p}", "s_setprio 1",
                     f"s_cmp_gt_u32 s{sNT}, 1", f"s_cbranch_scc1 K2_PR{p}", "s_setprio 0", f"K2_PR{p}:"]
        if p==1:
            body += ["s_cmp_lg_u32 s74, 0", "s_cbranch_scc1 K2_XUD", "s_mov_b32 s74, 1"] + uload(XU,1) + ["K2_XUD:"]
        for blk in range(2):
            z=Z+16*blk; g=G+32*p+16*blk
            Eo=[f"v_exp_f32 v{z+r}, v{z+r}" for r in range(16)]
            if var=='A':
                So=[f"v_lshlrev_b32 v{I+r}, 16, v{g+r}" for r in range(16)]; ih=I
            else: So=[]; ih=g
            if pk: Fo=[f"v_pk_fma_f32 v[{z+r}:{z+r+1}], v[{z+r}:{z+r+1}], v[{ih+r}:{ih+r+1}], v[{ih+r}:{ih+r+1}]" for r in range(0,16,2)]
            else: Fo=[f"v_fma_f32 v{z+r}, v{z+r}, v{ih+r}, v{ih+r}" for r in range(16)]
            if So and not pk:
                SF=So[:2]
                for r in range(16):
                    if r+2<16: SF.append(So[r+2])
                    SF.append(Fo[r])
            else: SF=So+Fo
            Ro=[f"v_rcp_f32 v{z+r}, v{z+r}" for r in range(16)]
            Co=[f"v_cvt_pk_bf16_f32 v{P+r}, v{z+2*r}, v{z+2*r+1}" for r in range(8)]
            seg=[mf(ACC+16*blk,S,P,ACC+16*blk), mf(ACC+16*blk,S+4,P+4,ACC+16*blk)]
            if blk==0:
                nz=zm(p,1); w=('wait',[('vm',f'G1_{p}')])
            else:
                nz=zm(1-p,0); w=('wait',[('vm',f'EA_{1-p}'),('vm',f'G0_{1-p}'),('ds','ST')])
            nE = 4 if var=='B' else 3
            Eph=[]; k=0
            for r in range(16):
                Eph.append(Eo[r])
                if r%4==2 and k<nE:
                    if k==0: Eph.append(w)
                    Eph.append(nz[k]); k+=1
                if blk==0 and r==0:
                    Eph += [('ds','S',x) for x in sread()]
            post=[]
            if blk==0:
                post=[('ds','x',ohclr(p)),('ds','x',ohset(1-p))]+[('ds','ST',x) for x in stread()]+[('ds','L2',eread(p)), f"v_add_u32 v{vPE}, 128, v{vPE}"]
            else:
                post=[('wait',[('ds','L2')])]+edec(p)+[('vm',f'EA_{p}',eaload(p))]
            SFph = SF[:4]+post+SF[4:]
            gl=[('vm',f'G{blk}_{p}',x) for x in gload(p,blk)]
            if nog: gl=[gl[0]]+["s_nop 0"]*15
            Rph=[]
            if blk==0: Rph.append(('wait',[('ds','OFF')]))
            rest=nz[nE:]
            for r in range(16):
                Rph.append(Ro[r]); Rph.append(gl[r])
                if r%4==0 and rest: Rph.append(rest.pop(0))
            Cph=list(Co)
            if blk==1:
                Cph = [('ds','OFF',x) for x in offread()] + [f"v_add_u32 v{vPOFF}, 128, v{vPOFF}"] + Cph
            tail=[]
            if blk==0: tail.append(('wait',[('ds','S')]))
            else: tail.append("s_nop 0")
            tail.append("s_nop 0")
            body += hi+Eph+lo+SFph+hi+Rph+lo+Cph+tail+seg
        body += [f"s_sub_u32 s{sNT}, s{sNT}, 1", f"s_cmp_eq_u32 s{sNT}, 0"]
        body += ["s_cbranch_scc1 K2_NEXT"] if p==0 else ["s_cbranch_scc0 K2_LOOP"]
    if prio==2: a("s_setprio 3")
    a(".p2align 6")
    a.label("K2_LOOP")
    rb=resolve(body)
    def keep(l):
        if 'G' in drop and l.startswith('buffer_load_dword v') and f"s[{sT}:" in l: return False
        if 'D' in drop and l.startswith('ds_'): return False
        if 'M' in drop and l.startswith('v_mfma'): return False
        if 'W' in drop and l.startswith(('s_waitcnt','s_nop')): return False
        if 'T' in drop and l.startswith(('v_exp','v_rcp')): return False
        return True
    a.ext([l for l in rb if keep(l)])
    a.label("K2_NEXT")
    stamp(5)
    a(f"s_cmp_ge_u32 s{sOS}, 8"); a("s_cbranch_scc1 K2_EPI")
    a(f"s_mov_b32 m0, s{sOS}")
    a("s_nop 0")
    a(f"s_movrels_b32 s{sON}, s{sV}")
    a(f"s_min_u32 s{sON}, s{sON}, {OVFCAP}")
    a(f"s_cmp_lt_u32 s{sOC}, s{sON}"); a("s_cbranch_scc1 K2_OV")
    a(f"s_add_u32 s{sOS}, s{sOS}, 1"); a(f"s_mov_b32 s{sOC}, 0")
    a("s_branch K2_NEXT")
    a.label("K2_OV")
    a(f"s_mul_i32 s{sA}, s{sOS}, {OVFCAP}"); a(f"s_add_u32 s{sA}, s{sA}, s{sOC}"); a(f"s_add_u32 s{sA}, s{sA}, {OVF0}")
    a(f"v_add_u32 v14, s{sA}, v{vLANE}")
    a("v_lshlrev_b32 v13, 2, v14")
    a("s_waitcnt vmcnt(0) lgkmcnt(0)")
    a(f"buffer_load_dword v{P}, v13, s[{sREC}:{sREC+3}], 0 offen")
    a(f"v_add_u32 v13, 62, v{vOHB}")
    a(f"ds_write_b16 v13, v{vZERO} offset:{LO_OH}")
    a("v_lshlrev_b32 v14, 5, v14")
    a(f"s_sub_u32 s{sA}, s{sON}, s{sOC}")
    a(f"s_add_u32 s{sOC}, s{sOC}, 64")
    a("s_waitcnt vmcnt(0)")
    a(f"v_lshrrev_b32 v13, 22, v{P}")
    a(f"v_cmpx_gt_u32 vcc, s{sA}, v{vLANE}")
    a(f"v_cmpx_eq_u32 vcc, s{sB}, v13")
    a(f"s_bcnt1_i32_b64 s{sPOS}, exec")
    a("s_nop 1")
    a("v_mbcnt_lo_u32_b32 v13, exec_lo, 0")
    a("v_mbcnt_hi_u32_b32 v13, exec_hi, v13")
    a(f"v_lshl_add_u32 v13, v13, 2, s{sLB}")
    a.ext(stage(P,13,14,0))
    a("s_mov_b64 exec, -1")
    a(f"s_cmp_eq_u32 s{sPOS}, 0"); a("s_cbranch_scc1 K2_NEXT")
    a("s_branch K2_PASS")
    for i in range(8):
        a.label(f"K2_BIG{i}")
        a(f"buffer_load_dword v{R0+i}, v11, s[{sREC}:{sREC+3}], s62 offen offset:{512*i+256}")
        a("v_add_u32 v13, 256, v13"); a("v_add_u32 v14, 2048, v12")
        a("s_waitcnt vmcnt(0)")
        a.ext(stage(R0+i,13,14,f"s{sCE}"))
        a(f"s_branch K2_BIGR{i}")
    a.label("K2_EPI")
    a("s_cmp_lg_u32 s74, 0"); a("s_cbranch_scc1 K2_EPI2")
    a.ext(uload(XU,1)); a("s_waitcnt vmcnt(0)")
    a.label("K2_EPI2")
    a("s_waitcnt vmcnt(33)")
    a(f"v_lshlrev_b32 v12, 9, v{vH}"); a(f"v_lshl_add_u32 v12, v{vN}, 1, v12")
    a("s_movk_i32 s38, 0x2000")
    T=Z; Y=OFF+0
    idx=[(b,i) for i in range(10) for b in range(2)]
    Y=SEL if False else XAF
    for i in range(10):
        a(f"v_lshlrev_b32 v{Y+2*i}, 16, v{XU+i}")
        a(f"v_and_b32 v{Y+2*i+1}, 0xffff0000, v{XU+i}")
    for k,(b,i) in enumerate(idx): a(f"v_add_f32 v{Y+k}, v{Y+k}, v{ACC+16*b+i}")
    for k in range(20): a(f"v_mul_f32 v{T+k}, {hex(NLOG2E)}, v{Y+k}")
    for k in range(20): a(f"v_exp_f32 v{T+k}, v{T+k}")
    for k in range(20): a(f"v_add_f32 v{T+k}, 1.0, v{T+k}")
    for k in range(20): a(f"v_rcp_f32 v{T+k}, v{T+k}")
    for k in range(20): a(f"v_mul_f32 v{T+k}, v{T+k}, v{Y+k}")
    for i in range(10):
        a(f"v_cvt_pk_bf16_f32 v{T+2*i}, v{T+2*i}, v{T+2*i+1}")
        off=i*1024; so=["0",f"s{sK}","s38"][off//4096]
        a(f"buffer_store_short v{T+2*i}, v12, s[{sOUT}:{sOUT+3}], {so} offen offset:{off%4096}{out_mod}")
        a(f"buffer_store_short_d16_hi v{T+2*i}, v12, s[{sOUT}:{sOUT+3}], {so} offen offset:{off%4096+64}{out_mod}")
    if stamps:
        stamp(6)
        a("s_waitcnt vmcnt(0)")
        stamp(7)
        a(f"s_lshl_b32 s91, s2, 3"); a(f"s_add_u32 s90, s{sWAVE}, s91"); a("s_lshl_b32 s90, s90, 6"); a(f"s_add_u32 s90, s90, {WS_STAMP+0x100000}")
        for i in range(8): a(f"v_mov_b32 v{16+i}, s{92+i}")
        a(f"v_mov_b32 v24, s{sPOS}")
        a("v_mov_b32 v1, s90")
        for i in range(3): a(f"global_store_dwordx4 v1, v[{16+4*i}:{19+4*i}], s[34:35] offset:{16*i}")
    if dbg:
        a("s_cmp_lg_u32 s2, 100"); a("s_cbranch_scc1 K2_END")
        a(f"s_cmp_lg_u32 s{sWAVE}, 0"); a("s_cbranch_scc1 K2_END")
        a("s_load_dwordx2 s[36:37], s[0:1], 64")
        a(f"s_add_u32 s38, s34, {WS_STAMP+(100*8+4)*64}"); a("s_addc_u32 s39, s35, 0")
        a("s_load_dwordx8 s[40:47], s[38:39], 0"); a("s_load_dwordx4 s[48:51], s[38:39], 32")
        a("s_waitcnt lgkmcnt(0)")
        sel=[41,42,43,44,46,47,48,49,51, 92,93,95,96,97,99]
        for k,r in enumerate(sel):
            a(f"s_sub_u32 s52, s{r}, s40"); a(f"v_mov_b32 v{16+k}, s52")
        if leak is not None:
            a(f"s_sub_u32 s52, s{leak}, s40"); a("s_mul_i32 s52, s52, 10"); a("s_min_u32 s52, s52, 100000")
            a("s_add_u32 s52, s52, s99")
            a.label("K2_SPIN")
            a("s_memrealtime s[54:55]"); a("s_waitcnt lgkmcnt(0)")
            a("s_sub_u32 s53, s54, s52"); a("s_cmp_lt_i32 s53, 0"); a("s_cbranch_scc1 K2_SPIN")
        a("v_mov_b32 v31, 77"); a("v_mov_b32 v1, 0")
        for i in range(4): a(f"global_store_dwordx4 v1, v[{16+4*i}:{19+4*i}], s[36:37] offset:{16*i}")
    a.label("K2_END")
    a("s_endpgm")
    return a
```

```python
import gen, k1, k2
from asmlib import *
def probe(mod, both):
    a=Asm()
    NB=20000
    a("s_cmp_ge_u32 s2, 256"); a("s_cbranch_scc1 P_END")
    a("s_memrealtime s[20:21]"); a("s_load_dwordx4 s[4:7], s[0:1], 0"); a("s_load_dwordx2 s[34:35], s[0:1], 72"); a("s_waitcnt lgkmcnt(0)")
    a("s_mov_b32 s8, s4\ns_mov_b32 s9, s5\ns_mov_b32 s10, 5120000\ns_mov_b32 s11, 0x20000")
    a("s_mov_b32 s12, s6\ns_mov_b32 s13, s7\ns_mov_b32 s14, 5120000\ns_mov_b32 s15, 0x20000")
    a("v_lshlrev_b32 v5, 4, v0")
    a(f"s_mul_i32 s3, s2, 20480")
    for i in range(3):
        if i==2: a("v_cmp_gt_u32 vcc, 256, v0"); a("s_and_saveexec_b64 s[30:31], vcc"); a("s_cbranch_execz P_S1")
        a(f"buffer_load_dwordx4 v[{12+4*i}:{15+4*i}], v5, s[8:11], s3 offen {mod}")
        if both: a(f"buffer_load_dwordx4 v[{24+4*i}:{27+4*i}], v5, s[12:15], s3 offen nt")
        a("s_add_u32 s3, s3, 8192")
    a.label("P_S1"); a("s_mov_b64 exec, -1")
    a("s_waitcnt vmcnt(0)\ns_barrier\ns_memrealtime s[22:23]\ns_sleep 16\ns_memrealtime s[26:27]")
    for rep in range(1,5):
        a(f"s_add_u32 s3, s2, {8*rep}\ns_and_b32 s3, s3, 255\ns_mul_i32 s3, s3, 20480")
        for i in range(2):
            a(f"buffer_load_dwordx4 v[{12+4*i}:{15+4*i}], v5, s[8:11], s3 offen\ns_add_u32 s3, s3, 8192")
    a("s_waitcnt vmcnt(0)\ns_barrier\ns_memrealtime s[24:25]\ns_waitcnt lgkmcnt(0)")
    a("s_sub_u32 s22, s22, s20\ns_sub_u32 s24, s24, s26")
    a("v_mov_b32 v4, s22\nv_mov_b32 v5, s24")
    a(f"s_lshl_b32 s3, s2, 3\ns_add_u32 s3, s3, {k1.WS_STAMP}\nv_mov_b32 v8, s3")
    a("global_store_dwordx2 v8, v[4:5], s[34:35]")
    a.label("P_END"); a("s_endpgm")
    return a
def fin():
    a=Asm()
    a("s_cmp_ge_u32 s2, 1"); a("s_cbranch_scc1 F_END")
    a("s_load_dwordx4 s[4:7], s[0:1], 64"); a("s_waitcnt lgkmcnt(0)")
    a("v_cmp_gt_u32 vcc, 8, v0"); a("s_and_saveexec_b64 s[30:31], vcc")
    a("v_mul_u32_u24 v1, 248, v0"); a(f"v_add_u32 v1, {k1.WS_STAMP+40}, v1")
    a("global_load_dwordx2 v[2:3], v1, s[6:7]"); a("v_lshlrev_b32 v4, 3, v0"); a("s_waitcnt vmcnt(0)")
    a("global_store_dwordx2 v4, v[2:3], s[4:5]")
    a.label("F_END"); a("s_endpgm")
    return a
K1=("k1_kernel", k1.gen_k1(fmt='A',spf=0,wb=0), 256, 512, k1.K1_LDS, 256, 96)
K2=("k2_kernel", k2.gen_k2(var='A',prio=2), 256, 512, k2.K2_LDS, 256, 102)
for nm,mod,both in (('d0','',0),('n0','nt',0),('d1','',1),('n1','nt',1)):
    gen.build([("p_kernel",probe(mod,both),256,512,0,64,48),K1,K2,("f_kernel",fin(),1,64,0,16,48)], f"pr_{nm}.s")
gen.build([K1,K2], "v8_a.s")
```
